```python
import torch

def _softmax(x, axis=-1):
    return torch.softmax(x, dim=axis)
def _gelu(x):
    return torch.nn.functional.gelu(x, approximate="tanh")
def _silu(x):
    return torch.nn.functional.silu(x)
def _sigmoid(x):
    return torch.sigmoid(x)
def _layernorm(x, axis=-1, eps=1e-5):
    m = x.mean(dim=axis, keepdim=True)
    v = x.var(dim=axis, keepdim=True, unbiased=False)
    return (x - m) / torch.sqrt(v + eps)
def _scatter_add(tgt, idx, src, axis=0):
    return tgt.clone().index_add_(axis, idx, src)
def _segment_sum(src, seg, n):
    out = torch.zeros((n,) + src.shape[1:], dtype=src.dtype)
    return out.index_add_(0, seg, src)
def _pad(x, pw):
    flat = tuple(v for pair in reversed(pw) for v in pair)
    return torch.nn.functional.pad(x, flat)

kernel_name = 'standalone__mha_softmax__near_ridge'

def setup_inputs():

    _w = (lambda a: (lambda t: t.to(torch.bfloat16) if t.is_floating_point() else t)(torch.as_tensor(a)))
    B, H, Sq, Sk, D = 8, 32, 368, 512, 128
    return {
        "q": _w((lambda *s: torch.randn(*s, dtype=torch.bfloat16) * 0.8)(B, H, Sq, D)),
        "k": _w((lambda *s: torch.randn(*s, dtype=torch.bfloat16) * 0.8)(B, H, Sk, D)),
        "v": _w((lambda *s: torch.randn(*s, dtype=torch.bfloat16) * 0.05)(B, H, Sk, D)),
    }

def reference(q, k, v):
    scale = q.shape[-1] ** -0.5
    scores = torch.einsum("bhqd,bhkd->bhqk", q, k) * scale
    p = _softmax(scores, axis=-1)
    return torch.einsum("bhqk,bhkd->bhqd", p, v)
```

```python
import subprocess, sys, os
TMPL = r'''
.amdgcn_target "amdgcn-amd-amdhsa--gfx950"
.text
.globl {name}
.p2align 8
.type {name},@function
{name}:
  s_load_dwordx4 s[4:7], s[0:1], 0
  v_and_b32 v1, 63, v0
  v_lshrrev_b32 v2, 6, v0
  v_lshlrev_b32 v3, 4, v1          ; lane*16
  v_readfirstlane_b32 s21, v2
  s_waitcnt lgkmcnt(0)
  s_mov_b32 s8, s4
  s_mov_b32 s9, s5
  s_mov_b32 s10, 0x4000000
  s_mov_b32 s11, 0x20000
  s_mov_b32 s12, s6
  s_mov_b32 s13, s7
  s_mov_b32 s14, 0x400000
  s_mov_b32 s15, 0x20000
{init}
  s_mov_b32 s20, {iters}
  s_barrier
  s_memtime s[16:17]
  s_waitcnt lgkmcnt(0)
  .p2align 6
LOOP_{name}:
{body}
  s_sub_u32 s20, s20, 1
  s_cmp_lg_u32 s20, 0
  s_cbranch_scc1 LOOP_{name}
  s_waitcnt vmcnt(0) lgkmcnt(0)
  s_memtime s[18:19]
  s_waitcnt lgkmcnt(0)
  s_sub_u32 s18, s18, s16
  s_mul_i32 s22, s2, {nw}
  s_add_u32 s22, s22, s21
  s_lshl_b32 s22, s22, 2
  v_mov_b32 v4, s22
  v_mov_b32 v5, s18
  v_cmp_eq_u32 vcc, 0, v1
  s_and_saveexec_b64 s[24:25], vcc
  buffer_store_dword v5, v4, s[12:15], 0 offen
  s_waitcnt vmcnt(0)
  s_endpgm
.section .rodata,"a"
.p2align 6
.amdhsa_kernel {name}
  .amdhsa_next_free_vgpr {nvgpr}
  .amdhsa_next_free_sgpr 64
  .amdhsa_accum_offset {accum}
  .amdhsa_group_segment_fixed_size 0
  .amdhsa_kernarg_size 16
  .amdhsa_user_sgpr_count 2
  .amdhsa_user_sgpr_kernarg_segment_ptr 1
  .amdhsa_system_sgpr_workgroup_id_x 1
.end_amdhsa_kernel
.amdgpu_metadata
---
amdhsa.version: [1, 2]
amdhsa.kernels:
  - .name: {name}
    .symbol: {name}.kd
    .kernarg_segment_size: 16
    .kernarg_segment_align: 8
    .group_segment_fixed_size: 0
    .private_segment_fixed_size: 0
    .wavefront_size: 64
    .sgpr_count: 64
    .vgpr_count: {nvgpr}
    .max_flat_workgroup_size: 1024
    .args:
      - {{.name: a, .size: 8, .offset: 0, .value_kind: global_buffer, .address_space: global}}
      - {{.name: b, .size: 8, .offset: 8, .value_kind: global_buffer, .address_space: global}}
...
.end_amdgpu_metadata
'''
class MB:
    def __init__(self, outdir):
        self.outdir = outdir; os.makedirs(outdir, exist_ok=True)
        self.lines = []; self.files = []
    def add(self, name, body, label, nmfma, block=256, grid=1, lds=65536, iters=200, init='', nvgpr=256, accum=256):
        ini = ''.join(f'  v_mov_b32 v{i}, 0x3c003c00\n' for i in range(6, min(nvgpr,accum)))
        if nvgpr > accum:
            ini += ''.join(f'  v_accvgpr_write_b32 a{i}, 0\n' for i in range(nvgpr-accum))
        ini += init
        s = TMPL.format(name=name, init=ini, body=body, iters=iters, nw=block//64, nvgpr=nvgpr, accum=accum)
        sp = f'{self.outdir}/{name}.s'; co = f'{self.outdir}/{name}.co'
        open(sp,'w').write(s)
        r = subprocess.run(['clang','-x','assembler','-target','amdgcn-amd-amdhsa','-mcpu=gfx950',sp,'-o',co],capture_output=True,text=True)
        if r.returncode: print(r.stderr); sys.exit(1)
        os.remove(sp)
        self.lines.append(f'{co} {name} {grid} {block} {lds} {iters*nmfma} {label}')
        self.files.append(co)
    def finish(self):
        open(f'{self.outdir}/list.txt','w').write('\n'.join(self.lines)+'\n')
        print(len(self.files), 'kernels')
```

```python
from mbgen import MB
import sys
mb = MB('mb4')
def m32(i):
    d = 64 + 16*(i%4); return f'  v_mfma_f32_32x32x16_bf16 v[{d}:{d+15}], v[8:11], v[12:15], v[{d}:{d+15}]\n'
def m16(i):
    d = 64 + 4*(i%8); return f'  v_mfma_f32_16x16x32_bf16 v[{d}:{d+3}], v[8:11], v[12:15], v[{d}:{d+3}]\n'
cnt=[0]
def r():
    cnt[0]=(cnt[0]+1)%48; return 128+cnt[0]
lc=[0]
def Lf():
    lc[0]+=1; k=lc[0]%8; return f'  ds_read_b128 v[{192+4*k}:{195+4*k}], v3\n'
def Tf():
    lc[0]+=1; k=lc[0]%8; return f'  ds_read_b64_tr_b16 v[{224+2*k}:{225+2*k}], v4\n'
F = {
 'e': lambda: f'  v_exp_f32 v{r()}, v20\n',
 'a': lambda: f'  v_add_f32 v{r()}, v20, v21\n',
 'f': lambda: f'  v_fma_f32 v{r()}, v20, v21, v22\n',
 'c': lambda: f'  v_cvt_pk_bf16_f32 v{r()}, v20, v21\n',
 'L': Lf, 'T': Tf,
 'n': lambda: '  s_nop 0\n',
 'w': lambda: '  s_waitcnt lgkmcnt(4)\n',
 'W': lambda: '  s_waitcnt vmcnt(24)\n',
 's': lambda: '  s_add_u32 s30, s31, s32\n',
 'B': lambda: '  s_barrier\n',
 'D': lambda: '  buffer_load_dwordx4 v3, s[8:11], s40 offen lds\n',
 'u': lambda: '  s_add_u32 s40, s40, 0x1000\n',
 'M': lambda: '  s_mov_b32 m0, s41\n',
}
k=0
init='''  v_lshlrev_b32 v4, 3, v1
  s_lshl_b32 s40, s2, 18
  s_lshl_b32 s41, s21, 10
  s_add_u32 s40, s40, s41
  s_add_u32 s41, s41, 0x8000
  s_mov_b32 m0, s41
'''
def add(kind, pats, block=256, grid=1, iters=50, nm=96):
    global k
    body=''; n=0
    while n < nm:
        for p in pats:
            body += (m32 if kind==32 else m16)(n); n+=1
            for ch in p: body += F[ch]()
    name=f'k{k}'; k+=1
    mb.add(name, body, f'mfma{kind} g{grid} pat={"|".join(pats)}', n, block=block, grid=grid, iters=iters, init=init)
for pats in (['Laaaaa'],['Laaaaaa'],['LLaaaa'],['LLaaaaa'],['TTaaaa'],['TTaaaaa'],['TTaaa'],['naaaaaa'],['nnaaaaa'],['saaaaaa'],['ssaaaaa'],['waaaaaa'],['wLaaaa'],['wLaaaaa'],['Lwaaaaa'],['nLaaaaa'],
             ['aanLa'],['aanLaa'],['aasLa'],['eLaa'],['eLa'],['TTefa'],['TTefac'],['TTea'],['TTeac']):
    add(32,pats)
for pats in (['Laa'],['Le'],['naa'],['ne'],['TT'],['TTa'],['e','Lac','e','Ta'],['Le','ac','Te','a'],['LL'],):
    add(16,pats)
E='efac'; E2='efa'
for grid in (1,256):
    base=[E,E2]*6
    add(32,base,grid=grid,iters=8)
    p=list(base); p[1]='D'+E2; p[3]='u'+E2; add(32,p,grid=grid,iters=8)
    p=list(base); p[1]='D'; p[3]='u'+E2; add(32,p,grid=grid,iters=8)
    p=list(base); p[1]=E2+'D'; p[3]='u'+E2; add(32,p,grid=grid,iters=8)
    p=list(base); p[1]='D'+E2; p[3]='u'+E2; p[5]='W'+E2; add(32,p,grid=grid,iters=8)
    p=list(base)*4; p[1]='B'+E2; add(32,p,grid=grid,iters=8)
    p=list(base)*4; p[1]='B'; add(32,p,grid=grid,iters=8)
    p=list(base)*4; p[1]='WB'+E2;
    for j in (3,7,11,15): p[j]='D'+E2; p[j+2]='u'+E2
    add(32,p,grid=grid,iters=8)
    p=list(base)*4; p[1]='WB'+E2;
    for j in (3,15,27,39): p[j]='D'+E2; p[j+2]='u'+E2
    add(32,p,grid=grid,iters=8)
mb.finish()
```
